```python
import torch

def _softmax(x, axis=-1):
    return torch.softmax(x, dim=axis)
def _gelu(x):
    return torch.nn.functional.gelu(x, approximate="tanh")
def _silu(x):
    return torch.nn.functional.silu(x)
def _sigmoid(x):
    return torch.sigmoid(x)
def _layernorm(x, axis=-1, eps=1e-5):
    m = x.mean(dim=axis, keepdim=True)
    v = x.var(dim=axis, keepdim=True, unbiased=False)
    return (x - m) / torch.sqrt(v + eps)
def _scatter_add(tgt, idx, src, axis=0):
    return tgt.clone().index_add_(axis, idx, src)
def _segment_sum(src, seg, n):
    out = torch.zeros((n,) + src.shape[1:], dtype=src.dtype)
    return out.index_add_(0, seg, src)
def _pad(x, pw):
    flat = tuple(v for pair in reversed(pw) for v in pair)
    return torch.nn.functional.pad(x, flat)

kernel_name = 'standalone__deep_cross_pnn__recsys'

def setup_inputs():

    _w = (lambda a: (lambda t: t.to(torch.bfloat16) if t.is_floating_point() else t)(torch.as_tensor(a)))
    B, F, D, V = 16384, 26, 64, min(1000, 100000)
    H = 4 * D
    return {
        "idx": _w((lambda lo, hi, *s: torch.randint(lo, hi, s))(0, V, B, F).to(torch.int64)),
        "table": _w((lambda *s: torch.randn(*s, dtype=torch.bfloat16) * 3.2)(V, D) * (D ** -0.5)),
        "w_p": _w((lambda *s: torch.randn(*s, dtype=torch.bfloat16) * 0.05)(F * F) * ((F * F) ** -0.5)),
        "w1": _w((lambda *s: torch.randn(*s, dtype=torch.bfloat16) * 3.2)(F * D, H) * ((F * D) ** -0.5)),
        "b1": _w((lambda *s: torch.randn(*s, dtype=torch.bfloat16) * 3.2)(H) * 0.01),
        "w2": _w((lambda *s: torch.randn(*s, dtype=torch.bfloat16) * 0.05)(H) * (H ** -0.5)),
        "b2": _w((lambda *s: torch.randn(*s, dtype=torch.bfloat16) * 0.05)(1) * 0.01),
    }

def reference(idx, table, w_p, w1, b1, w2, b2):
    emb = table[idx]
    B = emb.shape[0]; F = emb.shape[1]; D = emb.shape[2]
    ip = torch.einsum('bid,bjd->bij', emb, emb)
    ip = ip.reshape(B, F * F)
    logit_p = ip @ w_p
    z = emb.reshape(B, F * D)
    h = _gelu(z @ w1 + b1)
    logit_d = h @ w2 + b2
    return logit_p + logit_d
```

```python
import sys, struct, argparse

def f2u(x): return struct.unpack("<I", struct.pack("<f", x))[0]

KNAME = "standalone__deep_cross_pnn__recsys"

TAB  = 0
IDX  = 147456
WP   = IDX + 8192
B1F  = WP + 2048
W2F  = B1F + 1024
PART = W2F + 1024
PNN  = PART + 1024
LDS_TOTAL = PNN + 256

sIDX, sTAB, sWP, sW1, sB1, sW2, sB2, sOUT, sWS = 4, 8, 12, 16, 20, 24, 28, 32, 36
sWAVE, sNH, sKH, sWOFF, sWBEG, sWEND, sSTOP, sT, sSELLO, sSELHI, s144 = 40, 41, 42, 43, 44, 45, 46, 47, 48, 49, 50
sT2 = 51
sGC = 52
sEX = 54
sCNT = 56
sSTAMP = 60

vLANE = 1
vW = 2
vZA = 6
vI = 8
vIA = 10
vIB = 12
vG = 14
vB2 = 15
vTMP = 16
vZ = 32
vF = 48
vR = 64
vACC = 128

class Gen:
    def __init__(self, o):
        self.o = o
        self.l = []
        self.nstamp = 0
    def __call__(self, s):
        for x in s.strip().split("\n"):
            x = x.strip()
            if x: self.l.append(x if x.endswith(":") else "    " + x)
    def stamp(self, i):
        if self.o.stamps:
            self(f"s_memtime s[{sSTAMP+2*i}:{sSTAMP+2*i+1}]")
    def text(self): return "\n".join(self.l) + "\n"

def vr(b, n): return f"v[{b}:{b+n-1}]" if n > 1 else f"v{b}"
def sr(b, n): return f"s[{b}:{b+n-1}]"

def acc(n, m): return vACC + (m*4 + n)*16
def mfma(n, m, zbuf):
    a = acc(n, m)
    return f"v_mfma_f32_32x32x16_bf16 {vr(a,16)}, {vr(vF+4*n,4)}, {vr(vZ+8*zbuf+4*m,4)}, {vr(a,16)}"
def swap(slot, j, i0):
    return f"v_permlane16_swap_b32 v{vR+16*slot+4*j+i0}, v{vR+16*slot+4*j+2+i0}"
def perm(slot, n, j):
    i0, h = n >> 1, n & 1
    return f"v_perm_b32 v{vF+4*n+j}, v{vR+16*slot+4*j+2+i0}, v{vR+16*slot+4*j+i0}, s{sSELHI if h else sSELLO}"
def wload(ks, j):
    return f"buffer_load_dwordx4 {vr(vR+16*ks+4*j,4)}, v{vW+ks}, {sr(sW1,4)}, s{sWOFF} offen offset:{1024*j}"
def zread(buf, m, ks):
    return f"ds_read_b128 {vr(vZ+8*buf+4*m,4)}, v{vZA+m} offset:{32*ks}"

def kstep(g, ks, last):
    nslot = (ks+1) % 4
    prep = not (last and ks == 3)
    ld = not last
    zb = ks & 1
    gaps = [[] for _ in range(8)]
    if prep:
        gaps[0] += [swap(nslot,0,0), swap(nslot,1,0), zread(zb^1,0,nslot), zread(zb^1,1,nslot)]
        gaps[1] += [swap(nslot,2,0), swap(nslot,3,0), perm(nslot,0,0), perm(nslot,0,1)]
        gaps[2] += [perm(nslot,0,2), perm(nslot,0,3), swap(nslot,0,1), swap(nslot,1,1)]
        gaps[3] += [perm(nslot,1,j) for j in range(4)]
        gaps[4] += [swap(nslot,2,1), swap(nslot,3,1)]
        gaps[5] += [perm(nslot,2,j) for j in range(4)]
        gaps[7] += [perm(nslot,3,j) for j in range(4)]
    if ld:
        gaps[3] += [wload(ks,0)]
        gaps[4] += [wload(ks,1)]
        gaps[5] += [wload(ks,2)]
        gaps[6] += [wload(ks,3)]
    lg = 0
    if ld:
        if ks == 0:
            gaps[6] += [f"s_lshr_b32 s{sT}, s{sWOFF}, 13", f"v_add_u32 v{vIA}, s{sT}, v{vIB}", f"v_add_u32 v{vIA+1}, s{sT}, v{vIB+1}",
                        f"ds_read_b32 v{vI}, v{vIA}"]
            gaps[7] += [f"ds_read_b32 v{vI+1}, v{vIA+1}"]
            lg = 2
        if ks == 2:
            gaps[6] += [f"v_mad_u32_u24 v{vZA}, v{vI}, s{s144}, v{vG}", f"v_mad_u32_u24 v{vZA+1}, v{vI+1}, s{s144}, v{vG}"]
        if ks == 3:
            gaps[6] += [f"s_add_u32 s{sWOFF}, s{sWOFF}, 0x8000", f"s_cmp_eq_u32 s{sWOFF}, s{sWEND}",
                        f"s_cselect_b32 s{sWOFF}, s{sWBEG}, s{sWOFF}", f"s_cmp_lg_u32 s{sWOFF}, s{sSTOP}"]
        gaps[7] += [f"s_waitcnt vmcnt(8) lgkmcnt({lg})"]
    else:
        if ks == 0: gaps[7] += ["s_waitcnt vmcnt(4) lgkmcnt(0)"]
        if ks == 1: gaps[7] += ["s_waitcnt vmcnt(0) lgkmcnt(0)"]
        if ks == 2: gaps[7] += ["s_waitcnt lgkmcnt(0)"]
    for i in range(8):
        g(mfma(i >> 1, i & 1, zb))
        for x in gaps[i]: g(x)

def table_dma(g, va):
    g(f"s_lshl_b32 s{sT}, s{sWAVE}, 13")
    g(f"s_mul_i32 s{sT2}, s{sWAVE}, 9216")
    g(f"s_mov_b32 m0, s{sT2}")
    for grp in range(2):
        if grp == 1:
            g(f"s_add_u32 s{sT}, s{sT}, 0x10000")
        for j in range(9):
            if not (grp == 0 and j == 0):
                g(f"s_add_u32 m0, m0, {1024 if j else (8*9216 - 8*1024)}")
            g("s_nop 0")
            g(f"buffer_load_dwordx4 v{va+j}, {sr(sTAB,4)}, s{sT} offen lds")

def build(o):
    g = Gen(o)
    hdr = open("cdna_kernels/" + KNAME + ".s.ref").read().split("\n")
    for line in hdr:
        if line.startswith("; @launch"):
            g.l.append(f"; @launch grid=(256,1,1) block=(512,1,1) lds={LDS_TOTAL}")
        elif line.startswith(";"):
            g.l.append(line)
        else:
            break
    g.l.append('.amdgcn_target "amdgcn-amd-amdhsa--gfx950"')
    g.l.append(".text")
    g.l.append(f".globl {KNAME}_kernel")
    g.l.append(".p2align 8")
    g.l.append(f".type {KNAME}_kernel,@function")
    g.l.append(f"{KNAME}_kernel:")
    g.stamp(0)
    g("s_cmp_ge_u32 s2, 256\ns_cbranch_scc1 L_end")
    for s, off in ((sIDX,0),(sTAB,8),(sW1,24),(sWP,16),(sB1,32),(sW2,40),(sB2,48),(sOUT,56)):
        g(f"s_load_dwordx2 {sr(s,2)}, s[0:1], {off}")
    if o.stamps: g(f"s_load_dwordx2 {sr(sWS,2)}, s[0:1], 72")
    g(f"v_lshrrev_b32 v2, 6, v0\nv_and_b32 v{vLANE}, 63, v0")
    g(f"v_readfirstlane_b32 s{sWAVE}, v2")
    for s, n in ((sIDX,1703936),(sTAB,128000),(sW1,851968),(sWP,1352),(sB1,512),(sW2,512),(sB2,2),(sOUT,32768),(sWS,0x1000000)):
        if s == sWS and not o.stamps: continue
        g(f"s_mov_b32 s{s+2}, {n}\ns_mov_b32 s{s+3}, 0x20000")
    va = vZ
    g(f"v_mul_u32_u24 v3, 58255, v{vLANE}")
    for j in range(9):
        g(f"v_add_u32 v{va+j}, {(64*j+1)*58255}, v3")
        g(f"v_lshrrev_b32 v{va+j}, 12, v{va+j}")
        g(f"v_and_b32 v{va+j}, -16, v{va+j}")
    g(f"v_lshlrev_b32 v{vTMP}, 4, v0")
    g(f"s_mul_i32 s{sT}, s2, 6656")
    g(f"s_lshl_b32 s{sT2}, s{sWAVE}, 10\ns_add_u32 m0, s{sT2}, {IDX}")
    g(f"s_cmp_ge_u32 s{sWAVE}, 4\ns_cbranch_scc1 L_helper")

    g(f"s_and_b32 s{sNH}, s{sWAVE}, 1\ns_lshr_b32 s{sKH}, s{sWAVE}, 1")
    g(f"""
    v_lshrrev_b32 v2, 5, v{vLANE}
    v_lshlrev_b32 v{vG}, 4, v2
    v_lshlrev_b32 v2, 12, v2
    v_bfe_u32 v3, v{vLANE}, 4, 1
    v_lshl_or_b32 v2, v3, 9, v2
    v_and_b32 v3, 15, v{vLANE}
    v_lshl_or_b32 v2, v3, 4, v2
    s_lshl_b32 s{sT2}, s{sNH}, 8
    v_or_b32 v{vW}, s{sT2}, v2
    v_add_u32 v{vW+1}, 0x2000, v{vW}
    v_add_u32 v{vW+2}, 0x4000, v{vW}
    v_add_u32 v{vW+3}, 0x6000, v{vW}
    s_lshr_b32 s{sWOFF}, s2, 3
    s_cmp_ge_u32 s{sWOFF}, 13
    s_cselect_b32 s{sT2}, 13, 0
    s_sub_u32 s{sWOFF}, s{sWOFF}, s{sT2}
    s_cmp_ge_u32 s{sWOFF}, 13
    s_cselect_b32 s{sT2}, 13, 0
    s_sub_u32 s{sWOFF}, s{sWOFF}, s{sT2}
    s_mul_i32 s{sWBEG}, s{sKH}, {13*32768}
    s_add_u32 s{sWEND}, s{sWBEG}, {13*32768}
    s_lshl_b32 s{sWOFF}, s{sWOFF}, 15
    s_add_u32 s{sWOFF}, s{sWOFF}, s{sWBEG}
    s_mov_b32 s{sSTOP}, s{sWOFF}
    """)
    g("s_waitcnt lgkmcnt(0)")
    g.stamp(1)
    g(f"buffer_load_dwordx4 v{vTMP}, {sr(sIDX,4)}, s{sT} offen lds")
    g(f"v_mov_b32 v{vB2}, 0\nv_mov_b32 v{vTMP+3}, 0")
    g(f"buffer_load_short_d16_hi v{vB2}, v{vTMP+3}, {sr(sB2,4)}, 0 offen")
    npre = o.wpre
    for t in range(npre): g(wload(t >> 2, t & 3))
    table_dma(g, va)
    for t in range(npre, 16): g(wload(t >> 2, t & 3))
    g(f"""
    s_mov_b32 s{sSELLO}, 0x05040100
    s_mov_b32 s{sSELHI}, 0x07060302
    s_movk_i32 s{s144}, 144
    s_mov_b32 s{sGC}, {hex(f2u(-2.0*1.4426950408889634*0.7978845608028654*0.044715))}
    s_mov_b32 s{sGC+1}, {hex(f2u(-2.0*1.4426950408889634*0.7978845608028654))}
    v_and_b32 v{vTMP+1}, 31, v{vLANE}
    v_mul_u32_u24 v{vTMP+1}, 104, v{vTMP+1}
    s_mul_i32 s{sT}, s{sKH}, 3328
    s_add_u32 s{sT2}, s{sT}, {IDX}
    v_add_u32 v{vIB}, s{sT2}, v{vTMP+1}
    s_sub_u32 s{sT2}, {IDX+3328}, s{sT}
    v_add_u32 v{vIB+1}, s{sT2}, v{vTMP+1}
    s_lshr_b32 s{sT}, s{sWOFF}, 13
    v_add_u32 v{vIA}, s{sT}, v{vIB}
    v_add_u32 v{vIA+1}, s{sT}, v{vIB+1}
    s_lshl_b32 s{sT}, s{sNH}, 9
    s_add_u32 s{sT}, s{sT}, {B1F}
    v_lshlrev_b32 v{vTMP+2}, 2, v{vG}
    v_add_u32 v{vTMP+2}, s{sT}, v{vTMP+2}
    """)
    for r in range(64): g(f"v_mov_b32 v{acc(0,1)+r}, 0")
    g(f"s_add_u32 s{sWOFF}, s{sWOFF}, 0x8000\ns_cmp_eq_u32 s{sWOFF}, s{sWEND}\ns_cselect_b32 s{sWOFF}, s{sWBEG}, s{sWOFF}")
    g(f"s_waitcnt vmcnt({18+16})")
    g("s_barrier")
    g.stamp(2)
    g(f"ds_read_b32 v{vI}, v{vIA}\nds_read_b32 v{vI+1}, v{vIA+1}")
    for n in range(4):
        for q in range(4):
            g(f"ds_read_b128 {vr(acc(n,0)+4*q,4)}, v{vTMP+2} offset:{128*n+16*q}")
    g("s_waitcnt lgkmcnt(0)")
    g(f"v_mad_u32_u24 v{vZA}, v{vI}, s{s144}, v{vG}\nv_mad_u32_u24 v{vZA+1}, v{vI+1}, s{s144}, v{vG}")
    if npre >= 4:
        g(f"s_waitcnt vmcnt({18+12})")
        for i0 in range(2):
            for j in range(4): g(swap(0,j,i0))
        for n in range(4):
            for j in range(4): g(perm(0,n,j))
    g(f"s_waitcnt vmcnt({16-npre})")
    g("s_barrier")
    g.stamp(3)
    if o.prio_deep: g(f"s_setprio {o.prio_deep}")
    g(zread(0,0,0)); g(zread(0,1,0))
    if npre < 4:
        g(f"s_waitcnt vmcnt(12)")
        for i0 in range(2):
            for j in range(4): g(swap(0,j,i0))
        for n in range(4):
            for j in range(4): g(perm(0,n,j))
    g("s_waitcnt vmcnt(8) lgkmcnt(0)")
    g(".p2align 6")
    g("L_loop:")
    for ks in range(4): kstep(g, ks, False)
    g("s_cbranch_scc1 L_loop")
    for ks in range(4): kstep(g, ks, True)
    g.stamp(4)
    g(f"""
    s_lshl_b32 s{sT}, s{sWAVE}, 14
    v_lshlrev_b32 v{vTMP}, 4, v{vLANE}
    v_add_u32 v{vTMP+1}, s{sT}, v{vTMP}
    s_xor_b32 s{sT}, s{sT}, {2<<14}
    v_add_u32 v{vTMP+3}, s{sT}, v{vTMP}
    v_add_u32 v{vTMP+2}, {W2F-B1F}, v{vTMP+2}
    s_barrier
    """)
    g.stamp(5)
    for q in range(16): g(f"ds_read_b128 {vr(vR+4*q,4)}, v{vTMP+2} offset:{128*(q>>2)+16*(q&3)}")
    for q in range(16): g(f"ds_write_b128 v{vTMP+1}, {vr(acc(0,1)+4*q,4)} offset:{1024*q}")
    g("s_waitcnt lgkmcnt(0)\ns_barrier")
    for q in range(16): g(f"ds_read_b128 {vr(acc(0,1)+4*q,4)}, v{vTMP+3} offset:{1024*q}")
    vO = vTMP+4
    g(f"v_mov_b32 v{vO}, 0\nv_mov_b32 v{vO+1}, 0")
    vT = vZ
    for grp in range(8):
        if grp % 2 == 0:
            g(f"s_waitcnt lgkmcnt({12 - 4*(grp//2)})")
            if grp == 0: g.stamp(6)
        P = [(acc(0,0)+8*grp+2*i, acc(0,1)+8*grp+2*i, vR+8*grp+2*i, vT+2*i) for i in range(4)]
        for x,y,w,t in P: g(f"v_pk_add_f32 {vr(x,2)}, {vr(x,2)}, {vr(y,2)}")
        for x,y,w,t in P: g(f"v_pk_mul_f32 {vr(t,2)}, {vr(x,2)}, {vr(x,2)}")
        for x,y,w,t in P: g(f"v_pk_fma_f32 {vr(t,2)}, {vr(t,2)}, {sr(sGC,2)}, {sr(sGC,2)} op_sel:[0,0,1] op_sel_hi:[1,0,1]")
        for x,y,w,t in P: g(f"v_pk_mul_f32 {vr(t,2)}, {vr(t,2)}, {vr(x,2)}")
        for x,y,w,t in P: g(f"v_exp_f32 v{t}, v{t}\nv_exp_f32 v{t+1}, v{t+1}")
        for x,y,w,t in P: g(f"v_pk_add_f32 {vr(t,2)}, {vr(t,2)}, 1.0 op_sel_hi:[1,0]")
        for x,y,w,t in P: g(f"v_rcp_f32 v{t}, v{t}\nv_rcp_f32 v{t+1}, v{t+1}")
        for x,y,w,t in P: g(f"v_pk_mul_f32 {vr(x,2)}, {vr(x,2)}, {vr(w,2)}")
        for x,y,w,t in P: g(f"v_pk_fma_f32 {vr(vO,2)}, {vr(x,2)}, {vr(t,2)}, {vr(vO,2)}")
    g.stamp(7)
    g(f"""
    v_add_f32 v{vO}, v{vO}, v{vO+1}
    s_lshl_b32 s{sT}, s{sNH}, 9
    s_lshl_b32 s{sT2}, s{sKH}, 7
    s_add_u32 s{sT}, s{sT}, s{sT2}
    s_add_u32 s{sT}, s{sT}, {PART}
    v_and_b32 v2, 31, v{vLANE}
    v_lshlrev_b32 v2, 2, v2
    v_lshl_add_u32 v2, v{vG}, 4, v2
    v_add_u32 v2, s{sT}, v2
    ds_write_b32 v2, v{vO}
    s_waitcnt lgkmcnt(0)
    s_barrier
    s_cmp_lg_u32 s{sWAVE}, 0
    s_cbranch_scc1 L_fin
    v_lshlrev_b32 v2, 2, v{vLANE}
    v_add_u32 v2, {PART}, v2
    ds_read2st64_b32 v[4:5], v2 offset0:0 offset1:1
    ds_read2st64_b32 v[6:7], v2 offset0:2 offset1:3
    ds_read_b32 v8, v2 offset:1024
    s_lshl_b32 s{sT}, s2, 7
    v_lshlrev_b32 v3, 1, v{vLANE}
    s_waitcnt lgkmcnt(0)
    v_add_f32 v4, v4, v5
    v_add_f32 v6, v6, v7
    v_add_f32 v8, v8, v{vB2}
    v_add_f32 v4, v4, v6
    v_add_f32 v4, v4, v8
    v_cvt_pk_bf16_f32 v4, v4, v4
    buffer_store_short v4, v3, {sr(sOUT,4)}, s{sT} offen
    s_branch L_fin
    """)

    g("L_helper:")
    hE = 2
    g(f"""
    v_and_b32 v2, 255, v0
    v_and_b32 v3, 3, v2
    v_lshlrev_b32 v3, 4, v3
    v_bfe_u32 v4, v2, 2, 1
    v_lshl_or_b32 v3, v4, 7, v3
    v_bfe_u32 v4, v2, 3, 1
    v_lshl_or_b32 v3, v4, 3, v3
    v_bfe_u32 v4, v2, 4, 1
    v_lshl_or_b32 v3, v4, 6, v3
    v_bfe_u32 v4, v2, 5, 2
    v_lshl_or_b32 v3, v4, 1, v3
    v_bfe_u32 v4, v2, 7, 1
    v_lshl_or_b32 v3, v4, 8, v3
    v_mov_b32 v5, 0
    v_mov_b32 v6, 0
    v_lshlrev_b32 v7, 4, v2
    s_waitcnt lgkmcnt(0)
    """)
    g.stamp(1)
    g(f"""
    buffer_load_dwordx4 v{vTMP}, {sr(sIDX,4)}, s{sT} offen lds
    buffer_load_short_d16_hi v5, v3, {sr(sB1,4)}, 0 offen
    buffer_load_short_d16_hi v6, v3, {sr(sW2,4)}, 0 offen
    s_cmp_ge_u32 s{sWAVE}, 6
    s_cbranch_scc1 L_h1
    s_lshl_b32 s{sT2}, s{sWAVE}, 10
    s_add_u32 m0, s{sT2}, {WP-4096}
    s_nop 0
    buffer_load_dwordx4 v7, {sr(sWP,4)}, 0 offen lds
    L_h1:
    """)
    table_dma(g, va)
    hW = 16
    hE = 64
    hD = 128
    hP = 8
    hI = 176
    hA = 12
    g(f"""
    s_movk_i32 s{s144}, 144
    v_lshlrev_b32 v2, 2, v2
    v_add_u32 v2, {B1F}, v2
    v_and_b32 v9, 15, v{vLANE}
    v_lshrrev_b32 v10, 4, v{vLANE}
    v_lshlrev_b32 v{vG}, 4, v10
    v_cmp_gt_u32 {sr(sEX,2)}, 13, v9
    v_mul_u32_u24 v11, 208, v10
    v_lshl_add_u32 v11, v9, 1, v11
    v_add_u32 v11, {WP}, v11
    v_mul_u32_u24 v13, 52, v9
    v_lshl_add_u32 v13, v10, 3, v13
    v_add_u32 v13, {WP + 13*52}, v13
    s_sub_u32 s{sT}, s{sWAVE}, 4
    s_mul_i32 s{sT}, s{sT}, {16*104}
    s_add_u32 s{sT}, s{sT}, {IDX}
    v_lshlrev_b32 v{hA}, 2, v9
    v_add_u32 v{hA}, s{sT}, v{hA}
    """)
    for r in range(16): g(f"v_mov_b32 v{hW+r}, 0")
    for r in range(64): g(f"v_mov_b32 v{hE+r}, 0")
    g(f"""
    s_waitcnt vmcnt(18)
    ds_write_b32 v2, v5
    ds_write_b32 v2, v6 offset:1024
    s_waitcnt lgkmcnt(0)
    s_barrier
    """)
    g.stamp(2)
    for r in range(4):
        g(f"ds_read_u16_d16_hi v{hW+r}, v11 offset:{52*r}")
        g(f"ds_read_u16_d16_hi v{hW+4+r}, v11 offset:{52*r+26}")
        g(f"ds_read_u16_d16_hi v{hW+8+r}, v11 offset:{52*r+13*52+26}")
        g(f"ds_read_u16_d16_hi v{hW+12+r}, v13 offset:{2*r}")
    g(f"v_cmp_eq_u32 vcc, 3, v10")
    g("s_waitcnt lgkmcnt(0)")
    for r in range(4): g(f"v_add_f32 v{hW+4+r}, v{hW+4+r}, v{hW+12+r}")
    for b in range(3):
        for r in range(1,4): g(f"v_cndmask_b32 v{hW+4*b+r}, v{hW+4*b+r}, 0, vcc")
    g(f"""
    s_sub_u32 s{sT}, s{sWAVE}, 4
    s_lshl_b32 s{sT}, s{sT}, 6
    s_add_u32 s{sT}, s{sT}, {PNN}
    v_lshlrev_b32 v13, 2, v10
    v_add_u32 v13, s{sT}, v13
    s_mov_b32 s{sCNT}, 4
    s_waitcnt vmcnt(0)
    s_barrier
    """)
    g.stamp(3)
    if o.prio_help: g(f"s_setprio {o.prio_help}")
    g("L_pnn:")
    for q in range(4): g(f"v_mov_b32 v{hP+q}, 0")
    g(f"s_mov_b64 exec, {sr(sEX,2)}")
    for q in range(4): g(f"ds_read2_b32 {vr(hI+2*q,2)}, v{hA} offset0:{26*q} offset1:{26*q+13}")
    g("s_waitcnt lgkmcnt(0)")
    for q in range(8): g(f"v_mad_u32_u24 v{hI+q}, v{hI+q}, s{s144}, v{vG}")
    for q in range(4):
        for b in range(2):
            for k in range(2):
                g(f"ds_read_b128 {vr(hE+16*q+8*b+4*k,4)}, v{hI+2*q+b} offset:{64*k}")
    g(f"v_add_u32 v{hA}, {4*104}, v{hA}")
    for q in range(4):
        g(f"s_waitcnt lgkmcnt({12-4*q})")
        E = lambda b,k: vr(hE+16*q+8*b+4*k,4)
        D = lambda t: vr(hD+12*q+4*t,4)
        for k in range(2):
            c = lambda t: "0" if k == 0 else D(t)
            g(f"v_mfma_f32_16x16x32_bf16 {D(0)}, {E(0,k)}, {E(0,k)}, {c(0)}")
            g(f"v_mfma_f32_16x16x32_bf16 {D(1)}, {E(0,k)}, {E(1,k)}, {c(1)}")
            g(f"v_mfma_f32_16x16x32_bf16 {D(2)}, {E(1,k)}, {E(1,k)}, {c(2)}")
    g("s_nop 7")
    for r in range(12):
        for q in range(4):
            g(f"v_fmac_f32 v{hP+q}, v{hW+r}, v{hD+12*q+r}")
    g(f"""
    s_mov_b64 exec, -1
    s_nop 1
    v_permlane32_swap_b32 v{hP}, v{hP+2}
    v_permlane32_swap_b32 v{hP+1}, v{hP+3}
    v_add_f32 v{hP}, v{hP}, v{hP+2}
    v_add_f32 v{hP+1}, v{hP+1}, v{hP+3}
    s_nop 1
    v_permlane16_swap_b32 v{hP}, v{hP+1}
    v_add_f32 v{hP}, v{hP}, v{hP+1}
    s_nop 1
    v_add_f32_dpp v{hP}, v{hP}, v{hP} row_ror:8 row_mask:0xf bank_mask:0xf
    s_nop 1
    v_add_f32_dpp v{hP}, v{hP}, v{hP} row_ror:4 row_mask:0xf bank_mask:0xf
    s_nop 1
    v_add_f32_dpp v{hP}, v{hP}, v{hP} row_ror:2 row_mask:0xf bank_mask:0xf
    s_nop 1
    v_add_f32_dpp v{hP}, v{hP}, v{hP} row_ror:1 row_mask:0xf bank_mask:0xf
    ds_write_b32 v13, v{hP}
    v_add_u32 v13, 16, v13
    s_sub_u32 s{sCNT}, s{sCNT}, 1
    s_cmp_lg_u32 s{sCNT}, 0
    s_cbranch_scc1 L_pnn
    s_waitcnt lgkmcnt(0)
    """)
    g.stamp(4)
    g("s_barrier")
    g("L_fin:")
    if o.stamps:
        g.stamp(8)
        g(f"s_memrealtime s[{sSTAMP+18}:{sSTAMP+19}]")
        g(f"s_lshl_b32 s{sT}, s2, 3\ns_add_u32 s{sT}, s{sT}, s{sWAVE}\ns_lshl_b32 s{sT}, s{sT}, 6")
        g("v_mov_b32 v3, 0\ns_waitcnt lgkmcnt(0)")
        for i in range(10):
            if 0 < i < 9: g(f"s_sub_u32 s{sSTAMP+2*i}, s{sSTAMP+2*i}, s{sSTAMP}")
            g(f"v_mov_b32 v2, s{sSTAMP+2*i}")
            g(f"buffer_store_dword v2, v3, {sr(sWS,4)}, s{sT} offen offset:{4*i}")
    g("L_end:")
    g("s_endpgm")
    g.l.append('.section .rodata,"a"')
    g.l.append(".p2align 6")
    g.l.append(f".amdhsa_kernel {KNAME}_kernel")
    for x in ("next_free_vgpr 256", "next_free_sgpr 96", "accum_offset 256", "group_segment_fixed_size 0", "kernarg_size 80",
              "user_sgpr_count 2", "user_sgpr_kernarg_segment_ptr 1", "system_sgpr_workgroup_id_x 1"):
        g.l.append("  .amdhsa_" + x)
    g.l.append(".end_amdhsa_kernel")
    return g.text()

def parse(argv):
    p = argparse.ArgumentParser()
    p.add_argument("-o", default="/dev/stdout")
    p.add_argument("--stamps", type=int, default=0)
    p.add_argument("--wpre", type=int, default=4)
    p.add_argument("--prio_deep", type=int, default=0)
    p.add_argument("--prio_help", type=int, default=0)
    return p.parse_args(argv)

if __name__ == "__main__":
    o = parse(sys.argv[1:])
    open(o.o, "w").write(build(o))
```

```python
import sys, struct, argparse

def f2u(x): return struct.unpack("<I", struct.pack("<f", x))[0]

KNAME = "standalone__deep_cross_pnn__recsys"

TAB  = 0
IDX  = 147456
WP   = IDX + 8192
B1F  = WP + 2048
W2F  = B1F + 1024
PART = W2F + 1024
PNN  = PART + 1024
LDS_TOTAL = PNN + 256

sIDX, sTAB, sWP, sW1, sB1, sW2, sB2, sOUT, sWS = 4, 8, 12, 16, 20, 24, 28, 32, 36
sWAVE, sNH, sKH, sWOFF, sWBEG, sWEND, sSTOP, sT, sSELLO, sSELHI, s144 = 40, 41, 42, 43, 44, 45, 46, 47, 48, 49, 50
sT2 = 51
sGC = 52
sEX = 54
sCNT = 56
sSTAMP = 60

vLANE = 1
vW = 2
vZA = 6
vI = 8
vIA = 10
vIB = 12
vG = 14
vB2 = 15
vTMP = 16
vZ = 32
vF = 48
vR = 64
vACC = 128

class Gen:
    def __init__(self, o):
        self.o = o
        self.l = []
        self.nstamp = 0
    def __call__(self, s):
        for x in s.strip().split("\n"):
            x = x.strip()
            if x: self.l.append(x if x.endswith(":") else "    " + x)
    def stamp(self, i):
        if self.o.stamps:
            self(f"s_memtime s[{sSTAMP+2*i}:{sSTAMP+2*i+1}]")
    def text(self): return "\n".join(self.l) + "\n"

def vr(b, n): return f"v[{b}:{b+n-1}]" if n > 1 else f"v{b}"
def sr(b, n): return f"s[{b}:{b+n-1}]"

def acc(n, m): return vACC + (m*4 + n)*16
def mfma(n, m, zbuf):
    a = acc(n, m)
    return f"v_mfma_f32_32x32x16_bf16 {vr(a,16)}, {vr(vF+4*n,4)}, {vr(vZ+8*zbuf+4*m,4)}, {vr(a,16)}"
def swap(slot, j, i0):
    return f"v_permlane16_swap_b32 v{vR+16*slot+4*j+i0}, v{vR+16*slot+4*j+2+i0}"
def perm(slot, n, j):
    i0, h = n >> 1, n & 1
    return f"v_perm_b32 v{vF+4*n+j}, v{vR+16*slot+4*j+2+i0}, v{vR+16*slot+4*j+i0}, s{sSELHI if h else sSELLO}"
def wload(ks, j):
    return f"buffer_load_dwordx4 {vr(vR+16*ks+4*j,4)}, v{vW+ks}, {sr(sW1,4)}, s{sWOFF} offen offset:{1024*j}"
def zread(buf, m, ks):
    return f"ds_read_b128 {vr(vZ+8*buf+4*m,4)}, v{vZA+m} offset:{32*ks}"

def kstep(g, ks, last):
    nslot = (ks+1) % 4
    prep = not (last and ks == 3)
    ld = not last
    zb = ks & 1
    gaps = [[] for _ in range(8)]
    if prep:
        gaps[0] += [swap(nslot,0,0), swap(nslot,1,0), zread(zb^1,0,nslot), zread(zb^1,1,nslot)]
        gaps[1] += [swap(nslot,2,0), swap(nslot,3,0), perm(nslot,0,0), perm(nslot,0,1)]
        gaps[2] += [perm(nslot,0,2), perm(nslot,0,3), swap(nslot,0,1), swap(nslot,1,1)]
        gaps[3] += [perm(nslot,1,j) for j in range(4)]
        gaps[4] += [swap(nslot,2,1), swap(nslot,3,1)]
        gaps[5] += [perm(nslot,2,j) for j in range(4)]
        gaps[7] += [perm(nslot,3,j) for j in range(4)]
    if ld:
        gaps[3] += [wload(ks,0)]
        gaps[4] += [wload(ks,1)]
        gaps[5] += [wload(ks,2)]
        gaps[6] += [wload(ks,3)]
    lg = 0
    if ld:
        if ks == 0:
            gaps[6] += [f"s_lshr_b32 s{sT}, s{sWOFF}, 13", f"v_add_u32 v{vIA}, s{sT}, v{vIB}", f"v_add_u32 v{vIA+1}, s{sT}, v{vIB+1}",
                        f"ds_read_b32 v{vI}, v{vIA}"]
            gaps[7] += [f"ds_read_b32 v{vI+1}, v{vIA+1}"]
            lg = 2
        if ks == 2:
            gaps[6] += [f"v_mad_u32_u24 v{vZA}, v{vI}, s{s144}, v{vG}", f"v_mad_u32_u24 v{vZA+1}, v{vI+1}, s{s144}, v{vG}"]
        if ks == 3:
            gaps[6] += [f"s_add_u32 s{sWOFF}, s{sWOFF}, 0x8000", f"s_cmp_eq_u32 s{sWOFF}, s{sWEND}",
                        f"s_cselect_b32 s{sWOFF}, s{sWBEG}, s{sWOFF}", f"s_cmp_lg_u32 s{sWOFF}, s{sSTOP}"]
        gaps[7] += [f"s_waitcnt vmcnt(8) lgkmcnt({lg})"]
    else:
        if ks == 0: gaps[7] += ["s_waitcnt vmcnt(4) lgkmcnt(0)"]
        if ks == 1: gaps[7] += ["s_waitcnt vmcnt(0) lgkmcnt(0)"]
        if ks == 2: gaps[7] += ["s_waitcnt lgkmcnt(0)"]
    for i in range(8):
        g(mfma(i >> 1, i & 1, zb))
        for x in gaps[i]: g(x)

def table_dma(g, va):
    g(f"s_lshl_b32 s{sT}, s{sWAVE}, 13")
    g(f"s_mul_i32 s{sT2}, s{sWAVE}, 9216")
    g(f"s_mov_b32 m0, s{sT2}")
    for grp in range(2):
        if grp == 1:
            g(f"s_add_u32 s{sT}, s{sT}, 0x10000")
        for j in range(9):
            if not (grp == 0 and j == 0):
                g(f"s_add_u32 m0, m0, {1024 if j else (8*9216 - 8*1024)}")
            g("s_nop 0")
            g(f"buffer_load_dwordx4 v{va+j}, {sr(sTAB,4)}, s{sT} offen lds")

def build(o):
    g = Gen(o)
    hdr = open("cdna_kernels/" + KNAME + ".s.ref").read().split("\n")
    for line in hdr:
        if line.startswith("; @launch"):
            g.l.append(f"; @launch grid=(256,1,1) block=(512,1,1) lds={LDS_TOTAL}")
        elif line.startswith(";"):
            g.l.append(line)
        else:
            break
    g.l.append('.amdgcn_target "amdgcn-amd-amdhsa--gfx950"')
    g.l.append(".text")
    g.l.append(f".globl {KNAME}_kernel")
    g.l.append(".p2align 8")
    g.l.append(f".type {KNAME}_kernel,@function")
    g.l.append(f"{KNAME}_kernel:")
    g.stamp(0)
    if o.stamps: g(f"s_memrealtime s[{sSTAMP+20}:{sSTAMP+21}]")
    g("s_cmp_ge_u32 s2, 256\ns_cbranch_scc1 L_end")
    for s, off in ((sIDX,0),(sTAB,8),(sW1,24),(sWP,16),(sB1,32),(sW2,40),(sB2,48),(sOUT,56)):
        g(f"s_load_dwordx2 {sr(s,2)}, s[0:1], {off}")
    if o.stamps: g(f"s_load_dwordx2 {sr(sWS,2)}, s[0:1], {64 if o.stamps == 2 else 72}")
    g(f"v_lshrrev_b32 v2, 6, v0\nv_and_b32 v{vLANE}, 63, v0")
    g(f"v_readfirstlane_b32 s{sWAVE}, v2")
    for s, n in ((sIDX,1703936),(sTAB,128000),(sW1,851968),(sWP,1352),(sB1,512),(sW2,512),(sB2,2),(sOUT,32768),(sWS,256 if o.stamps == 2 else 0x1000000)):
        if s == sWS and not o.stamps: continue
        g(f"s_mov_b32 s{s+2}, {n}\ns_mov_b32 s{s+3}, 0x20000")
    va = vZ
    g(f"v_mul_u32_u24 v3, 58255, v{vLANE}")
    for j in range(9):
        g(f"v_add_u32 v{va+j}, {(64*j+1)*58255}, v3")
        g(f"v_lshrrev_b32 v{va+j}, 12, v{va+j}")
        g(f"v_and_b32 v{va+j}, -16, v{va+j}")
    g(f"v_lshlrev_b32 v{vTMP}, 4, v0")
    g(f"s_mul_i32 s{sT}, s2, 6656")
    g(f"s_lshl_b32 s{sT2}, s{sWAVE}, 10\ns_add_u32 m0, s{sT2}, {IDX}")
    g(f"s_cmp_ge_u32 s{sWAVE}, 4\ns_cbranch_scc1 L_helper")

    g(f"s_and_b32 s{sNH}, s{sWAVE}, 1\ns_lshr_b32 s{sKH}, s{sWAVE}, 1")
    g(f"""
    v_lshrrev_b32 v2, 5, v{vLANE}
    v_lshlrev_b32 v{vG}, 4, v2
    v_lshlrev_b32 v2, 12, v2
    v_bfe_u32 v3, v{vLANE}, 4, 1
    v_lshl_or_b32 v2, v3, 9, v2
    v_and_b32 v3, 15, v{vLANE}
    v_lshl_or_b32 v2, v3, 4, v2
    s_lshl_b32 s{sT2}, s{sNH}, 8
    v_or_b32 v{vW}, s{sT2}, v2
    v_add_u32 v{vW+1}, 0x2000, v{vW}
    v_add_u32 v{vW+2}, 0x4000, v{vW}
    v_add_u32 v{vW+3}, 0x6000, v{vW}
    s_lshr_b32 s{sWOFF}, s2, 3
    s_cmp_ge_u32 s{sWOFF}, 13
    s_cselect_b32 s{sT2}, 13, 0
    s_sub_u32 s{sWOFF}, s{sWOFF}, s{sT2}
    s_cmp_ge_u32 s{sWOFF}, 13
    s_cselect_b32 s{sT2}, 13, 0
    s_sub_u32 s{sWOFF}, s{sWOFF}, s{sT2}
    s_mul_i32 s{sWBEG}, s{sKH}, {13*32768}
    s_add_u32 s{sWEND}, s{sWBEG}, {13*32768}
    s_lshl_b32 s{sWOFF}, s{sWOFF}, 15
    s_add_u32 s{sWOFF}, s{sWOFF}, s{sWBEG}
    s_mov_b32 s{sSTOP}, s{sWOFF}
    """)
    g("s_waitcnt lgkmcnt(0)")
    g.stamp(1)
    g(f"buffer_load_dwordx4 v{vTMP}, {sr(sIDX,4)}, s{sT} offen lds")
    g(f"v_mov_b32 v{vB2}, 0\nv_mov_b32 v{vTMP+3}, 0")
    g(f"buffer_load_short_d16_hi v{vB2}, v{vTMP+3}, {sr(sB2,4)}, 0 offen")
    npre = o.wpre
    for t in range(npre): g(wload(t >> 2, t & 3))
    table_dma(g, va)
    for t in range(npre, 16): g(wload(t >> 2, t & 3))
    g(f"""
    s_mov_b32 s{sSELLO}, 0x05040100
    s_mov_b32 s{sSELHI}, 0x07060302
    s_movk_i32 s{s144}, 144
    s_mov_b32 s{sGC}, {hex(f2u(-2.0*1.4426950408889634*0.7978845608028654*0.044715))}
    s_mov_b32 s{sGC+1}, {hex(f2u(-2.0*1.4426950408889634*0.7978845608028654))}
    v_and_b32 v{vTMP+1}, 31, v{vLANE}
    v_mul_u32_u24 v{vTMP+1}, 104, v{vTMP+1}
    s_mul_i32 s{sT}, s{sKH}, 3328
    s_add_u32 s{sT2}, s{sT}, {IDX}
    v_add_u32 v{vIB}, s{sT2}, v{vTMP+1}
    s_sub_u32 s{sT2}, {IDX+3328}, s{sT}
    v_add_u32 v{vIB+1}, s{sT2}, v{vTMP+1}
    s_lshr_b32 s{sT}, s{sWOFF}, 13
    v_add_u32 v{vIA}, s{sT}, v{vIB}
    v_add_u32 v{vIA+1}, s{sT}, v{vIB+1}
    s_lshl_b32 s{sT}, s{sNH}, 9
    s_add_u32 s{sT}, s{sT}, {B1F}
    v_lshlrev_b32 v{vTMP+2}, 2, v{vG}
    v_add_u32 v{vTMP+2}, s{sT}, v{vTMP+2}
    """)
    for r in range(64): g(f"v_mov_b32 v{acc(0,1)+r}, 0")
    g(f"s_add_u32 s{sWOFF}, s{sWOFF}, 0x8000\ns_cmp_eq_u32 s{sWOFF}, s{sWEND}\ns_cselect_b32 s{sWOFF}, s{sWBEG}, s{sWOFF}")
    g(f"s_waitcnt vmcnt({18+16})")
    g("s_barrier")
    g.stamp(2)
    g(f"ds_read_b32 v{vI}, v{vIA}\nds_read_b32 v{vI+1}, v{vIA+1}")
    for n in range(4):
        for q in range(4):
            g(f"ds_read_b128 {vr(acc(n,0)+4*q,4)}, v{vTMP+2} offset:{128*n+16*q}")
    g("s_waitcnt lgkmcnt(0)")
    g(f"v_mad_u32_u24 v{vZA}, v{vI}, s{s144}, v{vG}\nv_mad_u32_u24 v{vZA+1}, v{vI+1}, s{s144}, v{vG}")
    if npre >= 4:
        g(f"s_waitcnt vmcnt({18+12})")
        for i0 in range(2):
            for j in range(4): g(swap(0,j,i0))
        for n in range(4):
            for j in range(4): g(perm(0,n,j))
    g(f"s_waitcnt vmcnt({16-npre})")
    g("s_barrier")
    g.stamp(3)
    if o.prio_deep: g(f"s_setprio {o.prio_deep}")
    g(zread(0,0,0)); g(zread(0,1,0))
    if npre < 4:
        g(f"s_waitcnt vmcnt(12)")
        for i0 in range(2):
            for j in range(4): g(swap(0,j,i0))
        for n in range(4):
            for j in range(4): g(perm(0,n,j))
    g("s_waitcnt vmcnt(8) lgkmcnt(0)")
    g(".p2align 6")
    g("L_loop:")
    for ks in range(4): kstep(g, ks, False)
    g("s_cbranch_scc1 L_loop")
    for ks in range(4): kstep(g, ks, True)
    g.stamp(4)
    g(f"""
    s_lshl_b32 s{sT}, s{sWAVE}, 14
    v_lshlrev_b32 v{vTMP}, 4, v{vLANE}
    v_add_u32 v{vTMP+1}, s{sT}, v{vTMP}
    s_xor_b32 s{sT}, s{sT}, {2<<14}
    v_add_u32 v{vTMP+3}, s{sT}, v{vTMP}
    v_add_u32 v{vTMP+2}, {W2F-B1F}, v{vTMP+2}
    s_barrier
    """)
    g.stamp(5)
    for q in range(16): g(f"ds_read_b128 {vr(vR+4*q,4)}, v{vTMP+2} offset:{128*(q>>2)+16*(q&3)}")
    for q in range(16): g(f"ds_write_b128 v{vTMP+1}, {vr(acc(0,1)+4*q,4)} offset:{1024*q}")
    g("s_waitcnt lgkmcnt(0)\ns_barrier")
    for q in range(16): g(f"ds_read_b128 {vr(acc(0,1)+4*q,4)}, v{vTMP+3} offset:{1024*q}")
    vO = vTMP+4
    g(f"v_mov_b32 v{vO}, 0\nv_mov_b32 v{vO+1}, 0")
    vT = vZ
    for grp in range(8):
        if grp % 2 == 0:
            g(f"s_waitcnt lgkmcnt({12 - 4*(grp//2)})")
            if grp == 0: g.stamp(6)
        P = [(acc(0,0)+8*grp+2*i, acc(0,1)+8*grp+2*i, vR+8*grp+2*i, vT+2*i) for i in range(4)]
        for x,y,w,t in P: g(f"v_pk_add_f32 {vr(x,2)}, {vr(x,2)}, {vr(y,2)}")
        for x,y,w,t in P: g(f"v_pk_mul_f32 {vr(t,2)}, {vr(x,2)}, {vr(x,2)}")
        for x,y,w,t in P: g(f"v_pk_fma_f32 {vr(t,2)}, {vr(t,2)}, {sr(sGC,2)}, {sr(sGC,2)} op_sel:[0,0,1] op_sel_hi:[1,0,1]")
        for x,y,w,t in P: g(f"v_pk_mul_f32 {vr(t,2)}, {vr(t,2)}, {vr(x,2)}")
        for x,y,w,t in P: g(f"v_exp_f32 v{t}, v{t}\nv_exp_f32 v{t+1}, v{t+1}")
        for x,y,w,t in P: g(f"v_pk_add_f32 {vr(t,2)}, {vr(t,2)}, 1.0 op_sel_hi:[1,0]")
        for x,y,w,t in P: g(f"v_rcp_f32 v{t}, v{t}\nv_rcp_f32 v{t+1}, v{t+1}")
        for x,y,w,t in P: g(f"v_pk_mul_f32 {vr(x,2)}, {vr(x,2)}, {vr(w,2)}")
        for x,y,w,t in P: g(f"v_pk_fma_f32 {vr(vO,2)}, {vr(x,2)}, {vr(t,2)}, {vr(vO,2)}")
    g.stamp(7)
    g(f"""
    v_add_f32 v{vO}, v{vO}, v{vO+1}
    s_lshl_b32 s{sT}, s{sNH}, 9
    s_lshl_b32 s{sT2}, s{sKH}, 7
    s_add_u32 s{sT}, s{sT}, s{sT2}
    s_add_u32 s{sT}, s{sT}, {PART}
    v_and_b32 v2, 31, v{vLANE}
    v_lshlrev_b32 v2, 2, v2
    v_lshl_add_u32 v2, v{vG}, 4, v2
    v_add_u32 v2, s{sT}, v2
    ds_write_b32 v2, v{vO}
    s_waitcnt lgkmcnt(0)
    s_barrier
    s_cmp_lg_u32 s{sWAVE}, 0
    s_cbranch_scc1 L_fin
    v_lshlrev_b32 v2, 2, v{vLANE}
    v_add_u32 v2, {PART}, v2
    ds_read2st64_b32 v[4:5], v2 offset0:0 offset1:1
    ds_read2st64_b32 v[6:7], v2 offset0:2 offset1:3
    ds_read_b32 v8, v2 offset:1024
    s_lshl_b32 s{sT}, s2, 7
    v_lshlrev_b32 v3, 1, v{vLANE}
    s_waitcnt lgkmcnt(0)
    v_add_f32 v4, v4, v5
    v_add_f32 v6, v6, v7
    v_add_f32 v8, v8, v{vB2}
    v_add_f32 v4, v4, v6
    v_add_f32 v4, v4, v8
    v_cvt_pk_bf16_f32 v4, v4, v4
    buffer_store_short v4, v3, {sr(sOUT,4)}, s{sT} offen
    s_branch L_fin
    """)

    g("L_helper:")
    hE = 2
    g(f"""
    v_and_b32 v2, 255, v0
    v_and_b32 v3, 3, v2
    v_lshlrev_b32 v3, 4, v3
    v_bfe_u32 v4, v2, 2, 1
    v_lshl_or_b32 v3, v4, 7, v3
    v_bfe_u32 v4, v2, 3, 1
    v_lshl_or_b32 v3, v4, 3, v3
    v_bfe_u32 v4, v2, 4, 1
    v_lshl_or_b32 v3, v4, 6, v3
    v_bfe_u32 v4, v2, 5, 2
    v_lshl_or_b32 v3, v4, 1, v3
    v_bfe_u32 v4, v2, 7, 1
    v_lshl_or_b32 v3, v4, 8, v3
    v_mov_b32 v5, 0
    v_mov_b32 v6, 0
    v_lshlrev_b32 v7, 4, v2
    s_waitcnt lgkmcnt(0)
    """)
    g.stamp(1)
    g(f"""
    buffer_load_dwordx4 v{vTMP}, {sr(sIDX,4)}, s{sT} offen lds
    buffer_load_short_d16_hi v5, v3, {sr(sB1,4)}, 0 offen
    buffer_load_short_d16_hi v6, v3, {sr(sW2,4)}, 0 offen
    s_cmp_ge_u32 s{sWAVE}, 6
    s_cbranch_scc1 L_h1
    s_lshl_b32 s{sT2}, s{sWAVE}, 10
    s_add_u32 m0, s{sT2}, {WP-4096}
    s_nop 0
    buffer_load_dwordx4 v7, {sr(sWP,4)}, 0 offen lds
    L_h1:
    """)
    table_dma(g, va)
    hW = 16
    hE = 64
    hD = 128
    hP = 8
    hI = 176
    hA = 12
    g(f"""
    s_movk_i32 s{s144}, 144
    v_lshlrev_b32 v2, 2, v2
    v_add_u32 v2, {B1F}, v2
    v_and_b32 v9, 15, v{vLANE}
    v_lshrrev_b32 v10, 4, v{vLANE}
    v_lshlrev_b32 v{vG}, 4, v10
    v_cmp_gt_u32 {sr(sEX,2)}, 13, v9
    v_mul_u32_u24 v11, 208, v10
    v_lshl_add_u32 v11, v9, 1, v11
    v_add_u32 v11, {WP}, v11
    v_mul_u32_u24 v13, 52, v9
    v_lshl_add_u32 v13, v10, 3, v13
    v_add_u32 v13, {WP + 13*52}, v13
    s_sub_u32 s{sT}, s{sWAVE}, 4
    s_mul_i32 s{sT}, s{sT}, {16*104}
    s_add_u32 s{sT}, s{sT}, {IDX}
    v_lshlrev_b32 v{hA}, 2, v9
    v_add_u32 v{hA}, s{sT}, v{hA}
    """)
    for r in range(16): g(f"v_mov_b32 v{hW+r}, 0")
    for r in range(64): g(f"v_mov_b32 v{hE+r}, 0")
    g(f"""
    s_waitcnt vmcnt(18)
    ds_write_b32 v2, v5
    ds_write_b32 v2, v6 offset:1024
    s_waitcnt lgkmcnt(0)
    s_barrier
    """)
    g.stamp(2)
    for r in range(4):
        g(f"ds_read_u16_d16_hi v{hW+r}, v11 offset:{52*r}")
        g(f"ds_read_u16_d16_hi v{hW+4+r}, v11 offset:{52*r+26}")
        g(f"ds_read_u16_d16_hi v{hW+8+r}, v11 offset:{52*r+13*52+26}")
        g(f"ds_read_u16_d16_hi v{hW+12+r}, v13 offset:{2*r}")
    g(f"v_cmp_eq_u32 vcc, 3, v10")
    g("s_waitcnt lgkmcnt(0)")
    for r in range(4): g(f"v_add_f32 v{hW+4+r}, v{hW+4+r}, v{hW+12+r}")
    for b in range(3):
        for r in range(1,4): g(f"v_cndmask_b32 v{hW+4*b+r}, v{hW+4*b+r}, 0, vcc")
    g(f"""
    s_sub_u32 s{sT}, s{sWAVE}, 4
    s_lshl_b32 s{sT}, s{sT}, 6
    s_add_u32 s{sT}, s{sT}, {PNN}
    v_lshlrev_b32 v13, 2, v10
    v_add_u32 v13, s{sT}, v13
    s_mov_b32 s{sCNT}, 4
    s_waitcnt vmcnt(0)
    s_barrier
    """)
    g.stamp(3)
    if o.prio_help: g(f"s_setprio {o.prio_help}")
    g("L_pnn:")
    for q in range(4): g(f"v_mov_b32 v{hP+q}, 0")
    g(f"s_mov_b64 exec, {sr(sEX,2)}")
    for q in range(4): g(f"ds_read2_b32 {vr(hI+2*q,2)}, v{hA} offset0:{26*q} offset1:{26*q+13}")
    g("s_waitcnt lgkmcnt(0)")
    for q in range(8): g(f"v_mad_u32_u24 v{hI+q}, v{hI+q}, s{s144}, v{vG}")
    for q in range(4):
        for b in range(2):
            for k in range(2):
                g(f"ds_read_b128 {vr(hE+16*q+8*b+4*k,4)}, v{hI+2*q+b} offset:{64*k}")
    g(f"v_add_u32 v{hA}, {4*104}, v{hA}")
    for q in range(4):
        g(f"s_waitcnt lgkmcnt({12-4*q})")
        E = lambda b,k: vr(hE+16*q+8*b+4*k,4)
        D = lambda t: vr(hD+12*q+4*t,4)
        for k in range(2):
            c = lambda t: "0" if k == 0 else D(t)
            g(f"v_mfma_f32_16x16x32_bf16 {D(0)}, {E(0,k)}, {E(0,k)}, {c(0)}")
            g(f"v_mfma_f32_16x16x32_bf16 {D(1)}, {E(0,k)}, {E(1,k)}, {c(1)}")
            g(f"v_mfma_f32_16x16x32_bf16 {D(2)}, {E(1,k)}, {E(1,k)}, {c(2)}")
    g("s_nop 7")
    for r in range(12):
        for q in range(4):
            g(f"v_fmac_f32 v{hP+q}, v{hW+r}, v{hD+12*q+r}")
    g(f"""
    s_mov_b64 exec, -1
    s_nop 1
    v_permlane32_swap_b32 v{hP}, v{hP+2}
    v_permlane32_swap_b32 v{hP+1}, v{hP+3}
    v_add_f32 v{hP}, v{hP}, v{hP+2}
    v_add_f32 v{hP+1}, v{hP+1}, v{hP+3}
    s_nop 1
    v_permlane16_swap_b32 v{hP}, v{hP+1}
    v_add_f32 v{hP}, v{hP}, v{hP+1}
    s_nop 1
    v_add_f32_dpp v{hP}, v{hP}, v{hP} row_ror:8 row_mask:0xf bank_mask:0xf
    s_nop 1
    v_add_f32_dpp v{hP}, v{hP}, v{hP} row_ror:4 row_mask:0xf bank_mask:0xf
    s_nop 1
    v_add_f32_dpp v{hP}, v{hP}, v{hP} row_ror:2 row_mask:0xf bank_mask:0xf
    s_nop 1
    v_add_f32_dpp v{hP}, v{hP}, v{hP} row_ror:1 row_mask:0xf bank_mask:0xf
    ds_write_b32 v13, v{hP}
    v_add_u32 v13, 16, v13
    s_sub_u32 s{sCNT}, s{sCNT}, 1
    s_cmp_lg_u32 s{sCNT}, 0
    s_cbranch_scc1 L_pnn
    s_waitcnt lgkmcnt(0)
    """)
    g.stamp(4)
    g("s_barrier")
    g("L_fin:")
    if o.stamps:
        g.stamp(8)
        g(f"s_memrealtime s[{sSTAMP+18}:{sSTAMP+19}]")
        g(f"s_lshl_b32 s{sT}, s2, 3\ns_add_u32 s{sT}, s{sT}, s{sWAVE}\ns_lshl_b32 s{sT}, s{sT}, 6")
        g("v_mov_b32 v3, 0\ns_waitcnt lgkmcnt(0)")
        if o.stamps == 1:
            for i in range(11):
                if 0 < i < 9: g(f"s_sub_u32 s{sSTAMP+2*i}, s{sSTAMP+2*i}, s{sSTAMP}")
                g(f"v_mov_b32 v2, s{sSTAMP+2*i}")
                g(f"buffer_store_dword v2, v3, {sr(sWS,4)}, s{sT} offen offset:{4*i}")
        else:
            g(f"s_mov_b64 exec, 1\ns_cmp_ge_u32 s{sWAVE}, 4\ns_cbranch_scc1 L_end")
            for i in range(1, 11):
                if i < 9: g(f"s_sub_u32 s{sSTAMP+2*i}, s{sSTAMP+2*i}, s{sSTAMP}")
                if i == 10: g(f"s_not_b32 s{sSTAMP+2*i}, s{sSTAMP+2*i}")
                g(f"v_mov_b32 v2, s{sSTAMP+2*i}")
                g(f"buffer_atomic_umax v2, v3, {sr(sWS,4)}, 0 offen offset:{4*i}")
    g("L_end:")
    g("s_endpgm")
    g.l.append('.section .rodata,"a"')
    g.l.append(".p2align 6")
    g.l.append(f".amdhsa_kernel {KNAME}_kernel")
    for x in ("next_free_vgpr 256", "next_free_sgpr 96", "accum_offset 256", "group_segment_fixed_size 0", "kernarg_size 80",
              "user_sgpr_count 2", "user_sgpr_kernarg_segment_ptr 1", "system_sgpr_workgroup_id_x 1"):
        g.l.append("  .amdhsa_" + x)
    g.l.append(".end_amdhsa_kernel")
    return g.text()

def parse(argv):
    p = argparse.ArgumentParser()
    p.add_argument("-o", default="/dev/stdout")
    p.add_argument("--stamps", type=int, default=0)
    p.add_argument("--wpre", type=int, default=4)
    p.add_argument("--prio_deep", type=int, default=0)
    p.add_argument("--prio_help", type=int, default=0)
    return p.parse_args(argv)

if __name__ == "__main__":
    o = parse(sys.argv[1:])
    open(o.o, "w").write(build(o))
```

```python
import sys, struct, argparse

def f2u(x): return struct.unpack("<I", struct.pack("<f", x))[0]
KNAME = "standalone__deep_cross_pnn__recsys"

TAB  = 0
IDX  = 147456
WP   = IDX + 8192
B1F  = WP + 2048
W2F  = B1F + 1024
PART = W2F + 1024
PNN  = PART + 2048
LDS_TOTAL = PNN + 256

sIDX, sTAB, sWP, sW1, sB1, sW2, sB2, sOUT, sWS = 4, 8, 12, 16, 20, 24, 28, 32, 36
sWAVE, sNH, sKH, sWOFF, sWBEG, sWEND, sSTOP, sT, sSELLO, sSELHI, s144 = 40, 41, 42, 43, 44, 45, 46, 47, 48, 49, 50
sT2 = 51
sGC = 52
sEX = 54
sCNT = 56
sF4 = 57
sT3 = 58
sSTAMP = 60

vLANE = 1
vW = 2
vZA = 4
vIA = 8
vIB = 10
vG = 12
vB2 = 13
vBA = 14
vTMP = 15
vZ = 16
vF = 32
vR = 64
vACC = 128

class Gen:
    def __init__(self, o):
        self.o = o
        self.l = []
    def __call__(self, s):
        for x in s.strip().split("\n"):
            x = x.strip()
            if x: self.l.append(x if x.endswith(":") else "    " + x)
    def stamp(self, i):
        if self.o.stamps:
            self(f"s_memtime s[{sSTAMP+2*i}:{sSTAMP+2*i+1}]")
            if i == 3: self(f"s_memrealtime s[{sSTAMP+22}:{sSTAMP+23}]")
            if i == 4: self(f"s_memrealtime s[{sSTAMP+24}:{sSTAMP+25}]")
    def text(self): return "\n".join(self.l) + "\n"

def vr(b, n): return f"v[{b}:{b+n-1}]" if n > 1 else f"v{b}"
def sr(b, n): return f"s[{b}:{b+n-1}]"

def acc(n, m): return vACC + (m >> 1)*64 + ((m & 1)*8 + n)*4
def mfma(n, m):
    a = acc(n, m)
    return f"v_mfma_f32_16x16x32_bf16 {vr(a,4)}, {vr(vF+4*n,4)}, {vr(vZ+4*m,4)}, {vr(a,4)}"
WFLAGS = ""
def perm(slot, n, jj):
    i, h = n >> 1, n & 1
    b = vR + 32*slot
    return f"v_perm_b32 v{vF+4*n+jj}, v{b+4*(2*jj+1)+i}, v{b+4*(2*jj)+i}, s{sSELHI if h else sSELLO}"
def wload(ks, j):
    return f"buffer_load_dwordx4 {vr(vR+32*ks+4*j,4)}, v{vW+ks}, {sr(sW1,4)}, s{sWOFF} offen offset:{512*j}" + WFLAGS
def zread(m, ks):
    return f"ds_read_b128 {vr(vZ+4*m,4)}, v{vZA+m} offset:{64*ks}"
def iread(m):
    return f"ds_read_b32 v{vZA+m}, v{vIA+(m>>1)} offset:{1664*(m&1)}"
def mad(m):
    return f"v_mad_u32_u24 v{vZA+m}, v{vZA+m}, s{s144}, v{vG}"

def kstep(g, o, ks, last, first=False):
    S = [[] for _ in range(32)]
    V = [[] for _ in range(32)]
    nxt = ks ^ 1
    prep = not (last and ks == 1)
    tail = [perm(ks, 7, jj) for jj in range(4)]
    V[0] += [zread(2, ks), tail[0]]
    V[1] += [zread(3, ks), tail[1]]
    V[2] += [tail[2], tail[3]]
    lg_mid = 0
    if not last:
        for j, q in enumerate(o.vgaps):
            if j < o.nload: V[q] += [wload(ks, j)]
        free = [q for q in range(3, 16) if q not in o.vgaps]
        if ks == 0:
            S[free[0]] += [f"s_lshr_b32 s{sF4}, s{sWOFF}, 13"]
            V[free[0]] += [f"v_add_u32 v{vIA}, s{sF4}, v{vIB}", f"v_add_u32 v{vIA+1}, s{sF4}, v{vIB+1}"]
        if ks == 1:
            S[free[0]] += ["s_waitcnt lgkmcnt(2)"]
            V[free[0]] += [mad(0), mad(1)]
            V[free[1]] += [iread(2)]
            V[free[2]] += [iread(3)]
            lg_mid = 2
    S[15] += [f"s_waitcnt lgkmcnt({lg_mid})"]
    if prep:
        nks = nxt
        pl = [perm(nxt, n, jj) for n in range(7) for jj in range(4)]
        V[16] += [zread(0, nks)]
        if last: S[17] += ["s_waitcnt vmcnt(0)"]
        else: S[17] += [f"s_waitcnt vmcnt({o.nload})"]
        V[17] += [zread(1, nks), pl.pop(0)]
        extra = []
        lg_end = 0
        if not last and ks == 0:
            extra = [iread(0), iread(1)]
            lg_end = 2
        if not last and ks == 1:
            extra = [mad(2), mad(3)]
        if extra:
            if ks == 0:
                V[18] += [extra[0], pl.pop(0)]
                V[19] += [extra[1], pl.pop(0)]
                start = 20
            else:
                S[16] += ["s_waitcnt lgkmcnt(0)"]
                V[16] += [extra[0]]
                V[18] += [extra[1], pl.pop(0)]
                start = 19
        else:
            start = 18
        q = start
        while pl:
            if q <= 31:
                V[q] += [pl.pop(0)]
                if pl: V[q] += [pl.pop(0)]
                q += 1
            else:
                V[31] += [pl.pop(0)]
        if not last and ks == 1:
            S[20] += [f"s_add_u32 s{sWOFF}, s{sWOFF}, 0x8000"]
            S[21] += [f"s_cmp_eq_u32 s{sWOFF}, s{sWEND}"]
            S[22] += [f"s_cselect_b32 s{sWOFF}, s{sWBEG}, s{sWOFF}"]
            S[23] += [f"s_cmp_lg_u32 s{sWOFF}, s{sSTOP}"]
        S[31] += [f"s_waitcnt lgkmcnt({lg_end})"]
    for q in range(32):
        h, r = q >> 4, q & 15
        g(mfma(r >> 1, 2*h + (r & 1)))
        for x in S[q]: g(x)
        for x in V[q]:
            if x.startswith("v_perm") and q >= 16:
                n = (int(x.split()[1][1:-1]) - vF) >> 2
                assert q >= 17 + 2*n, (q, x)
            g(x)

def build(o):
    global WFLAGS
    WFLAGS = (" " + o.wflags.replace("+", " ")) if o.wflags else ""
    g = Gen(o)
    hdr = open("cdna_kernels/" + KNAME + ".s.ref").read().split("\n")
    for line in hdr:
        if line.startswith("; @launch"):
            g.l.append(f"; @launch grid=(256,1,1) block=(512,1,1) lds={LDS_TOTAL}")
        elif line.startswith(";"):
            g.l.append(line)
        else:
            break
    g.l.append('.amdgcn_target "amdgcn-amd-amdhsa--gfx950"')
    g.l.append(".text")
    g.l.append(f".globl {KNAME}_kernel")
    g.l.append(".p2align 8")
    g.l.append(f".type {KNAME}_kernel,@function")
    g.l.append(f"{KNAME}_kernel:")
    g.stamp(0)
    if o.stamps: g(f"s_memrealtime s[{sSTAMP+20}:{sSTAMP+21}]")
    g("s_cmp_ge_u32 s2, 256\ns_cbranch_scc1 L_end")
    g(f"v_lshrrev_b32 v2, 6, v0\nv_and_b32 v{vLANE}, 63, v0")
    g(f"s_load_dwordx2 {sr(sTAB,2)}, s[0:1], 8")
    g(f"v_readfirstlane_b32 s{sWAVE}, v2")
    if o.stamps: g(f"s_load_dwordx2 {sr(sWS,2)}, s[0:1], {64 if o.stamps == 2 else 72}")
    if o.stamps: g(f"s_mov_b32 s{sWS+2}, {256 if o.stamps == 2 else 0x1000000}\ns_mov_b32 s{sWS+3}, 0x20000")
    g(f"s_mov_b32 s{sTAB+2}, 128000\ns_mov_b32 s{sTAB+3}, 0x20000")
    g(f"s_movk_i32 s{s144}, 144")
    g(f"s_cmp_ge_u32 s{sWAVE}, 4\ns_cbranch_scc1 L_helper")

    for s, off in ((sIDX,0),(sW1,24),(sWP,16),(sB1,32),(sW2,40),(sB2,48),(sOUT,56)):
        g(f"s_load_dwordx2 {sr(s,2)}, s[0:1], {off}")
    for s, n in ((sIDX,1703936),(sW1,851968),(sWP,1352),(sB1,512),(sW2,512),(sB2,2),(sOUT,32768)):
        g(f"s_mov_b32 s{s+2}, {n}\ns_mov_b32 s{s+3}, 0x20000")
    t0, t1, t2, t3, t4, t5 = vZ, vZ+1, vZ+2, vZ+3, vZ+4, vZ+5
    g(f"""
    s_and_b32 s{sNH}, s{sWAVE}, 1
    s_lshr_b32 s{sKH}, s{sWAVE}, 1
    v_lshlrev_b32 v{t0}, 4, v0
    s_mul_i32 s{sT}, s2, 6656
    s_lshl_b32 s{sT2}, s{sWAVE}, 10
    s_add_u32 m0, s{sT2}, {IDX}
    v_and_b32 v{t1}, 3, v0
    v_lshlrev_b32 v{t1}, 4, v{t1}
    v_bfe_u32 v{t2}, v0, 2, 3
    v_lshl_or_b32 v{t1}, v{t2}, 1, v{t1}
    v_and_b32 v{t2}, 0xe0, v0
    v_lshl_or_b32 v{t1}, v{t2}, 1, v{t1}
    v_mov_b32 v{t2}, 0
    v_mov_b32 v{t3}, 0
    v_mov_b32 v{vB2}, 0
    v_mov_b32 v{t4}, 0
    s_lshr_b32 s{sT3}, s2, 3
    v_lshlrev_b32 v{t5}, 7, v{vLANE}
    v_cmp_gt_u32 vcc, 32, v{vLANE}
    s_lshl_b32 s{sCNT}, s{sT3}, 12
    s_nop 0
    v_cndmask_b32 v{t5}, -1, v{t5}, vcc
    s_waitcnt lgkmcnt(0)
    """)
    g.stamp(1)
    if o.pftab:
        g(f"s_cmp_lg_u32 s{sWAVE}, 0\ns_cbranch_scc1 L_d0")
        g(f"buffer_load_dword v{vTMP}, v{t5}, {sr(sTAB,4)}, s{sCNT} offen")
        g("L_d0:")
    g(f"""
    buffer_load_dwordx4 v{t0}, {sr(sIDX,4)}, s{sT} offen lds
    s_add_u32 m0, m0, 4096
    s_add_u32 s{sT}, s{sT}, 4096
    buffer_load_dwordx4 v{t0}, {sr(sIDX,4)}, s{sT} offen lds
    buffer_load_short_d16_hi v{t2}, v{t1}, {sr(sB1,4)}, 0 offen
    buffer_load_short_d16_hi v{t3}, v{t1}, {sr(sW2,4)}, 0 offen
    buffer_load_short_d16_hi v{vB2}, v{t4}, {sr(sB2,4)}, 0 offen
    s_cmp_ge_u32 s{sWAVE}, 2
    s_cbranch_scc1 L_d1
    s_add_u32 m0, s{sT2}, {WP}
    s_nop 0
    buffer_load_dwordx4 v{t0}, {sr(sWP,4)}, 0 offen lds
    L_d1:
    """)
    if o.pfw:
        g(f"""
        s_mul_i32 s{sT}, s{sT3}, 208
        s_mul_i32 s{sT2}, s{sWAVE}, 52
        s_add_u32 s{sT}, s{sT}, s{sT2}
        s_lshl_b32 s{sT}, s{sT}, 7
        v_lshlrev_b32 v{t5}, 7, v{vLANE}
        v_cmp_gt_u32 vcc, 52, v{vLANE}
        s_nop 1
        v_cndmask_b32 v{t5}, -1, v{t5}, vcc
        buffer_load_dword v{vTMP}, v{t5}, {sr(sW1,4)}, s{sT} offen
        """)
    g(f"""
    v_lshrrev_b32 v{t4}, 4, v{vLANE}
    v_lshlrev_b32 v{vG}, 4, v{t4}
    v_lshlrev_b32 v{vW}, 12, v{t4}
    v_and_b32 v{t5}, 15, v{vLANE}
    v_lshl_or_b32 v{vW}, v{t5}, 4, v{vW}
    s_lshl_b32 s{sT2}, s{sNH}, 8
    v_or_b32 v{vW}, s{sT2}, v{vW}
    v_add_u32 v{vW+1}, 0x4000, v{vW}
    s_cmp_ge_u32 s{sT3}, 13
    s_cselect_b32 s{sT2}, 13, 0
    s_sub_u32 s{sWOFF}, s{sT3}, s{sT2}
    s_cmp_ge_u32 s{sWOFF}, 13
    s_cselect_b32 s{sT2}, 13, 0
    s_sub_u32 s{sWOFF}, s{sWOFF}, s{sT2}
    s_mul_i32 s{sWBEG}, s{sKH}, {13*32768}
    s_add_u32 s{sWEND}, s{sWBEG}, {13*32768}
    s_lshl_b32 s{sWOFF}, s{sWOFF}, 15
    s_add_u32 s{sWOFF}, s{sWOFF}, s{sWBEG}
    s_mov_b32 s{sSTOP}, s{sWOFF}
    s_mov_b32 s{sSELLO}, 0x05040100
    s_mov_b32 s{sSELHI}, 0x07060302
    s_mov_b32 s{sGC}, {hex(f2u(-2.0*1.4426950408889634*0.7978845608028654*0.044715))}
    s_mov_b32 s{sGC+1}, {hex(f2u(-2.0*1.4426950408889634*0.7978845608028654))}
    v_mul_u32_u24 v{t5}, 104, v{t5}
    s_mul_i32 s{sT}, s{sKH}, 3328
    s_add_u32 s{sT2}, s{sT}, {IDX}
    v_add_u32 v{vIB}, s{sT2}, v{t5}
    s_sub_u32 s{sT2}, {IDX+3328}, s{sT}
    v_add_u32 v{vIB+1}, s{sT2}, v{t5}
    s_lshr_b32 s{sF4}, s{sWOFF}, 13
    v_add_u32 v{vIA}, s{sF4}, v{vIB}
    v_add_u32 v{vIA+1}, s{sF4}, v{vIB+1}
    s_lshl_b32 s{sT}, s{sNH}, 9
    s_add_u32 s{sT}, s{sT}, {B1F}
    v_lshlrev_b32 v{vBA}, 3, v{vG}
    v_add_u32 v{vBA}, s{sT}, v{vBA}
    v_lshlrev_b32 v{t0}, 2, v0
    v_add_u32 v{t0}, {B1F}, v{t0}
    """)
    g.stamp(13)
    for r in range(64): g(f"v_mov_b32 v{acc(0,2)+r}, 0")
    g.stamp(14)
    g(f"""
    s_waitcnt vmcnt(0)
    ds_write_b32 v{t0}, v{t2}
    ds_write_b32 v{t0}, v{t3} offset:1024
    s_waitcnt lgkmcnt(0)
    """)
    g.stamp(15)
    g("s_barrier")
    g.stamp(2)
    for m in range(4): g(iread(m))
    for j in range(8): g(wload(0, j))
    for mm in range(2):
        for n in range(8):
            g(f"ds_read_b128 {vr(acc(n,mm),4)}, v{vBA} offset:{16*n}")
    g("s_waitcnt lgkmcnt(15)")
    g("s_nop 0")
    for m in range(4): g(mad(m))
    g("s_barrier")
    g.stamp(3)
    if o.prio_deep: g(f"s_setprio {o.prio_deep}")
    g(zread(0,0)); g(zread(1,0))
    for j in range(8): g(wload(1, j))
    g(f"s_add_u32 s{sWOFF}, s{sWOFF}, 0x8000\ns_cmp_eq_u32 s{sWOFF}, s{sWEND}\ns_cselect_b32 s{sWOFF}, s{sWBEG}, s{sWOFF}")
    g(f"s_waitcnt vmcnt(8)")
    for n in range(7):
        for jj in range(4): g(perm(0,n,jj))
    g("s_waitcnt lgkmcnt(0)")
    if o.itstamp: g("s_mov_b32 m0, 0")
    g(".p2align 6")
    g("L_loop:")
    if o.itstamp: g("s_memtime s[92:93]")
    for ks in range(2): kstep(g, o, ks, False)
    if o.itstamp:
        g(f"s_cselect_b32 s94, 1, 0\ns_sub_u32 s92, s92, s{sSTAMP}\nv_writelane_b32 v{vTMP}, s92, m0\ns_add_u32 m0, m0, 1\ns_cmp_lg_u32 s94, 0")
    g("s_cbranch_scc1 L_loop")
    if o.itstamp:
        g(f"s_lshl_b32 s{sT}, s2, 3\ns_add_u32 s{sT}, s{sT}, s{sWAVE}\ns_lshl_b32 s{sT}, s{sT}, 8\ns_add_u32 s{sT}, s{sT}, 0x100000")
        g(f"v_lshlrev_b32 v{vIA}, 2, v{vLANE}\nbuffer_store_dword v{vTMP}, v{vIA}, {sr(sWS,4)}, s{sT} offen")
    for ks in range(2): kstep(g, o, ks, True)
    g.stamp(4)
    x0, x1 = vW, vW+1
    g(f"""
    s_lshl_b32 s{sT}, s{sWAVE}, 14
    v_lshlrev_b32 v{vTMP}, 4, v{vLANE}
    v_add_u32 v{x0}, s{sT}, v{vTMP}
    s_xor_b32 s{sT}, s{sT}, {2<<14}
    v_add_u32 v{x1}, s{sT}, v{vTMP}
    s_barrier
    """)
    g.stamp(5)
    for n in range(8): g(f"ds_read_b128 {vr(vR+4*n,4)}, v{vBA} offset:{1024+16*n}")
    for q in range(16): g(f"ds_write_b128 v{x0}, {vr(acc(0,2)+4*q,4)} offset:{1024*q}")
    g("s_waitcnt lgkmcnt(0)\ns_barrier")
    for q in range(16): g(f"ds_read_b128 {vr(acc(0,2)+4*q,4)}, v{x1} offset:{1024*q}")
    vO = vZA
    for i in range(4): g(f"v_mov_b32 v{vO+i}, 0")
    vT = vZ
    for grp in range(8):
        if grp % 2 == 0:
            g(f"s_waitcnt lgkmcnt({12 - 4*(grp//2)})")
            if grp == 0: g.stamp(6)
        P = [(acc(0,0)+8*grp+2*i, acc(0,2)+8*grp+2*i, vR+(8*grp+2*i)%32, vT+2*i) for i in range(4)]
        oo = vO + 2*(grp // 4)
        for x,y,w,t in P: g(f"v_pk_add_f32 {vr(x,2)}, {vr(x,2)}, {vr(y,2)}")
        for x,y,w,t in P: g(f"v_pk_mul_f32 {vr(t,2)}, {vr(x,2)}, {vr(x,2)}")
        for x,y,w,t in P: g(f"v_pk_fma_f32 {vr(t,2)}, {vr(t,2)}, {sr(sGC,2)}, {sr(sGC,2)} op_sel:[0,0,1] op_sel_hi:[1,0,1]")
        for x,y,w,t in P: g(f"v_pk_mul_f32 {vr(t,2)}, {vr(t,2)}, {vr(x,2)}")
        for x,y,w,t in P: g(f"v_exp_f32 v{t}, v{t}\nv_exp_f32 v{t+1}, v{t+1}")
        for x,y,w,t in P: g(f"v_pk_add_f32 {vr(t,2)}, {vr(t,2)}, 1.0 op_sel_hi:[1,0]")
        for x,y,w,t in P: g(f"v_rcp_f32 v{t}, v{t}\nv_rcp_f32 v{t+1}, v{t+1}")
        for x,y,w,t in P: g(f"v_pk_mul_f32 {vr(x,2)}, {vr(x,2)}, {vr(w,2)}")
        for x,y,w,t in P: g(f"v_pk_fma_f32 {vr(oo,2)}, {vr(x,2)}, {vr(t,2)}, {vr(oo,2)}")
    g.stamp(7)
    g(f"""
    v_add_f32 v{vO}, v{vO}, v{vO+1}
    v_add_f32 v{vO+2}, v{vO+2}, v{vO+3}
    s_lshl_b32 s{sT}, s{sNH}, 10
    s_lshl_b32 s{sT2}, s{sKH}, 7
    s_add_u32 s{sT}, s{sT}, s{sT2}
    s_add_u32 s{sT}, s{sT}, {PART}
    v_and_b32 v2, 15, v{vLANE}
    v_lshlrev_b32 v2, 2, v2
    v_lshl_add_u32 v2, v{vG}, 4, v2
    v_add_u32 v2, s{sT}, v2
    ds_write2_b32 v2, v{vO}, v{vO+2} offset0:0 offset1:16
    s_waitcnt lgkmcnt(0)
    s_barrier
    s_cmp_lg_u32 s{sWAVE}, 0
    s_cbranch_scc1 L_fin
    v_lshlrev_b32 v2, 2, v{vLANE}
    v_add_u32 v2, {PART}, v2
    ds_read2st64_b32 v[16:17], v2 offset0:0 offset1:1
    ds_read2st64_b32 v[18:19], v2 offset0:2 offset1:3
    ds_read2st64_b32 v[20:21], v2 offset0:4 offset1:5
    ds_read2st64_b32 v[22:23], v2 offset0:6 offset1:7
    ds_read_b32 v24, v2 offset:2048
    s_lshl_b32 s{sT}, s2, 7
    v_lshlrev_b32 v3, 1, v{vLANE}
    s_waitcnt lgkmcnt(0)
    v_pk_add_f32 v[16:17], v[16:17], v[18:19]
    v_pk_add_f32 v[20:21], v[20:21], v[22:23]
    v_add_f32 v24, v24, v{vB2}
    v_pk_add_f32 v[16:17], v[16:17], v[20:21]
    v_add_f32 v24, v24, v16
    v_add_f32 v4, v24, v17
    v_cvt_pk_bf16_f32 v4, v4, v4
    buffer_store_short v4, v3, {sr(sOUT,4)}, s{sT} offen
    s_branch L_fin
    """)

    g("L_helper:")
    va = 32
    if not o.finerot:
        g(f"v_mul_u32_u24 v3, 58255, v{vLANE}")
        for j in range(9):
            g(f"v_add_u32 v{va+j}, {(64*j+1)*58255}, v3")
            g(f"v_lshrrev_b32 v{va+j}, 12, v{va+j}")
            g(f"v_and_b32 v{va+j}, -16, v{va+j}")
        g(f"""
        s_lshr_b32 s{sT3}, s2, {3 if o.rottab else 8}
        s_lshl_b32 s{sT3}, s{sT3}, 2
        s_add_u32 s{sT3}, s{sT3}, s{sWAVE}
        s_mov_b32 s{sCNT}, 4
        s_waitcnt lgkmcnt(0)
        """)
        g.stamp(1)
        g(f"""
        L_tab:
        s_and_b32 s{sT3}, s{sT3}, 15
        s_lshl_b32 s{sT}, s{sT3}, 13
        s_mul_i32 m0, s{sT3}, 9216
        s_add_u32 s{sT3}, s{sT3}, 4
        """)
        for j in range(9):
            g(f"buffer_load_dwordx4 v{va+j}, {sr(sTAB,4)}, s{sT} offen lds")
            if j < 8: g("s_add_u32 m0, m0, 1024\ns_nop 0")
        g(f"s_sub_u32 s{sCNT}, s{sCNT}, 1\ns_cmp_lg_u32 s{sCNT}, 0\ns_cbranch_scc1 L_tab")
    else:
        g(f"""
        s_lshr_b32 s{sT3}, s2, 3
        s_mul_i32 s{sT3}, s{sT3}, 9
        s_lshr_b32 s{sT3}, s{sT3}, 3
        s_lshl_b32 s{sT3}, s{sT3}, 2
        s_add_u32 s{sT3}, s{sT3}, s{sWAVE}
        s_sub_u32 s{sT3}, s{sT3}, 4
        s_lshl_b32 s{sT3}, s{sT3}, 6
        s_mov_b32 s{sT2}, 0xe38e38e4
        v_add_u32 v3, 1, v{vLANE}
        s_mov_b32 s{sCNT}, 9
        s_waitcnt lgkmcnt(0)
        """)
        g.stamp(1)
        g("L_tab:")
        for j in range(4):
            g(f"""
            v_add_u32 v{va}, s{sT3}, v3
            s_lshl_b32 m0, s{sT3}, 4
            v_mul_hi_u32 v{va}, v{va}, s{sT2}
            s_add_u32 s{sT3}, s{sT3}, 256
            s_cmp_ge_u32 s{sT3}, 9216
            v_lshlrev_b32 v{va}, 4, v{va}
            s_cselect_b32 s{sT}, 9216, 0
            s_sub_u32 s{sT3}, s{sT3}, s{sT}
            buffer_load_dwordx4 v{va}, {sr(sTAB,4)}, 0 offen lds
            """)
        g(f"s_sub_u32 s{sCNT}, s{sCNT}, 1\ns_cmp_lg_u32 s{sCNT}, 0\ns_cbranch_scc1 L_tab")
    g.stamp(13)
    hW = 16
    hE = 64
    hD = 128
    hP = 4
    hI = 176
    hA = 8
    g(f"""
    v_and_b32 v9, 15, v{vLANE}
    v_lshrrev_b32 v10, 4, v{vLANE}
    v_lshlrev_b32 v{vG}, 4, v10
    v_cmp_gt_u32 {sr(sEX,2)}, 13, v9
    v_mul_u32_u24 v11, 208, v10
    v_lshl_add_u32 v11, v9, 1, v11
    v_add_u32 v11, {WP}, v11
    v_mul_u32_u24 v13, 52, v9
    v_lshl_add_u32 v13, v10, 3, v13
    v_add_u32 v13, {WP + 13*52}, v13
    s_sub_u32 s{sT}, s{sWAVE}, 4
    s_mul_i32 s{sT}, s{sT}, {16*104}
    s_add_u32 s{sT}, s{sT}, {IDX}
    v_lshlrev_b32 v{hA}, 2, v9
    v_add_u32 v{hA}, s{sT}, v{hA}
    """)
    for r in range(16): g(f"v_mov_b32 v{hW+r}, 0")
    g.stamp(15)
    g("s_barrier")
    g.stamp(2)
    for r in range(4):
        g(f"ds_read_u16_d16_hi v{hW+r}, v11 offset:{52*r}")
        g(f"ds_read_u16_d16_hi v{hW+4+r}, v11 offset:{52*r+26}")
        g(f"ds_read_u16_d16_hi v{hW+8+r}, v11 offset:{52*r+13*52+26}")
        g(f"ds_read_u16_d16_hi v{hW+12+r}, v13 offset:{2*r}")
    g(f"v_cmp_eq_u32 vcc, 3, v10")
    for r in range(64): g(f"v_mov_b32 v{hE+r}, 0")
    g("s_waitcnt lgkmcnt(0)")
    for r in range(4): g(f"v_add_f32 v{hW+4+r}, v{hW+4+r}, v{hW+12+r}")
    for b in range(3):
        for r in range(1,4): g(f"v_cndmask_b32 v{hW+4*b+r}, v{hW+4*b+r}, 0, vcc")
    g(f"""
    s_sub_u32 s{sT}, s{sWAVE}, 4
    s_lshl_b32 s{sT}, s{sT}, 6
    s_add_u32 s{sT}, s{sT}, {PNN}
    v_lshlrev_b32 v13, 2, v10
    v_add_u32 v13, s{sT}, v13
    s_mov_b32 s{sCNT}, {4 if not o.nopnn else 1}
    s_waitcnt vmcnt(0)
    """)
    g.stamp(14)
    g("s_barrier")
    g.stamp(3)
    if o.prio_help: g(f"s_setprio {o.prio_help}")
    g("L_pnn:")
    for q in range(4): g(f"v_mov_b32 v{hP+q}, 0")
    g(f"s_mov_b64 exec, {sr(sEX,2)}")
    for q in range(4): g(f"ds_read2_b32 {vr(hI+2*q,2)}, v{hA} offset0:{26*q} offset1:{26*q+13}")
    g("s_waitcnt lgkmcnt(0)")
    for q in range(8): g(f"v_mad_u32_u24 v{hI+q}, v{hI+q}, s{s144}, v{vG}")
    for q in range(4):
        for b in range(2):
            for k in range(2):
                g(f"ds_read_b128 {vr(hE+16*q+8*b+4*k,4)}, v{hI+2*q+b} offset:{64*k}")
    g(f"v_add_u32 v{hA}, {4*104}, v{hA}")
    for q in range(4):
        g(f"s_waitcnt lgkmcnt({12-4*q})")
        E = lambda b,k: vr(hE+16*q+8*b+4*k,4)
        D = lambda t: vr(hD+12*q+4*t,4)
        for k in range(2):
            c = lambda t: "0" if k == 0 else D(t)
            g(f"v_mfma_f32_16x16x32_bf16 {D(0)}, {E(0,k)}, {E(0,k)}, {c(0)}")
            g(f"v_mfma_f32_16x16x32_bf16 {D(1)}, {E(0,k)}, {E(1,k)}, {c(1)}")
            g(f"v_mfma_f32_16x16x32_bf16 {D(2)}, {E(1,k)}, {E(1,k)}, {c(2)}")
    g("s_nop 7")
    for r in range(12):
        for q in range(4):
            g(f"v_fmac_f32 v{hP+q}, v{hW+r}, v{hD+12*q+r}")
    g(f"""
    s_mov_b64 exec, -1
    s_nop 1
    v_permlane32_swap_b32 v{hP}, v{hP+2}
    v_permlane32_swap_b32 v{hP+1}, v{hP+3}
    v_add_f32 v{hP}, v{hP}, v{hP+2}
    v_add_f32 v{hP+1}, v{hP+1}, v{hP+3}
    s_nop 1
    v_permlane16_swap_b32 v{hP}, v{hP+1}
    v_add_f32 v{hP}, v{hP}, v{hP+1}
    s_nop 1
    v_add_f32_dpp v{hP}, v{hP}, v{hP} row_ror:8 row_mask:0xf bank_mask:0xf
    s_nop 1
    v_add_f32_dpp v{hP}, v{hP}, v{hP} row_ror:4 row_mask:0xf bank_mask:0xf
    s_nop 1
    v_add_f32_dpp v{hP}, v{hP}, v{hP} row_ror:2 row_mask:0xf bank_mask:0xf
    s_nop 1
    v_add_f32_dpp v{hP}, v{hP}, v{hP} row_ror:1 row_mask:0xf bank_mask:0xf
    ds_write_b32 v13, v{hP}
    v_add_u32 v13, 16, v13
    s_sub_u32 s{sCNT}, s{sCNT}, 1
    s_cmp_lg_u32 s{sCNT}, 0
    s_cbranch_scc1 L_pnn
    s_waitcnt lgkmcnt(0)
    """)
    g.stamp(4)
    g("s_barrier")
    g("L_fin:")
    if o.stamps:
        g.stamp(8)
        g(f"s_memrealtime s[{sSTAMP+18}:{sSTAMP+19}]")
        g(f"s_lshl_b32 s{sT}, s2, 3\ns_add_u32 s{sT}, s{sT}, s{sWAVE}\ns_lshl_b32 s{sT}, s{sT}, 6")
        g("v_mov_b32 v3, 0\ns_waitcnt lgkmcnt(0)")
        if o.stamps == 1:
            for i in range(16):
                if 0 < i < 9 or i > 12: g(f"s_sub_u32 s{sSTAMP+2*i}, s{sSTAMP+2*i}, s{sSTAMP}")
                g(f"v_mov_b32 v2, s{sSTAMP+2*i}")
                g(f"buffer_store_dword v2, v3, {sr(sWS,4)}, s{sT} offen offset:{4*i}")
        else:
            g(f"s_mov_b64 exec, 1\ns_cmp_ge_u32 s{sWAVE}, 4\ns_cbranch_scc1 L_end")
            for i in range(1, 11):
                if i < 9: g(f"s_sub_u32 s{sSTAMP+2*i}, s{sSTAMP+2*i}, s{sSTAMP}")
                if i == 10: g(f"s_not_b32 s{sSTAMP+2*i}, s{sSTAMP+2*i}")
                g(f"v_mov_b32 v2, s{sSTAMP+2*i}")
                g(f"buffer_atomic_umax v2, v3, {sr(sWS,4)}, 0 offen offset:{4*i}")
    g("L_end:")
    g("s_endpgm")
    g.l.append('.section .rodata,"a"')
    g.l.append(".p2align 6")
    g.l.append(f".amdhsa_kernel {KNAME}_kernel")
    for x in ("next_free_vgpr 256", "next_free_sgpr 96", "accum_offset 256", "group_segment_fixed_size 0", "kernarg_size 80",
              "user_sgpr_count 2", "user_sgpr_kernarg_segment_ptr 1", "system_sgpr_workgroup_id_x 1"):
        g.l.append("  .amdhsa_" + x)
    g.l.append(".end_amdhsa_kernel")
    return g.text()

def parse(argv):
    p = argparse.ArgumentParser()
    p.add_argument("-o", default="/dev/stdout")
    p.add_argument("--stamps", type=int, default=0)
    p.add_argument("--prio_deep", type=int, default=0)
    p.add_argument("--prio_help", type=int, default=0)
    p.add_argument("--pftab", type=int, default=1)
    p.add_argument("--rottab", type=int, default=1)
    p.add_argument("--nopnn", type=int, default=0)
    p.add_argument("--pfw", type=int, default=0)
    p.add_argument("--wflags", default="")
    p.add_argument("--nload", type=int, default=8)
    p.add_argument("--itstamp", type=int, default=0)
    p.add_argument("--finerot", type=int, default=0)
    p.add_argument("--vgaps", type=lambda s: [int(x) for x in s.split(",")], default=[3,5,7,9,11,13,14,15])
    return p.parse_args(argv)

if __name__ == "__main__":
    o = parse(sys.argv[1:])
    open(o.o, "w").write(build(o))
```
